```python
import torch

def _softmax(x, axis=-1):
    return torch.softmax(x, dim=axis)
def _gelu(x):
    return torch.nn.functional.gelu(x, approximate="tanh")
def _silu(x):
    return torch.nn.functional.silu(x)
def _sigmoid(x):
    return torch.sigmoid(x)
def _layernorm(x, axis=-1, eps=1e-5):
    m = x.mean(dim=axis, keepdim=True)
    v = x.var(dim=axis, keepdim=True, unbiased=False)
    return (x - m) / torch.sqrt(v + eps)
def _scatter_add(tgt, idx, src, axis=0):
    return tgt.clone().index_add_(axis, idx, src)
def _segment_sum(src, seg, n):
    out = torch.zeros((n,) + src.shape[1:], dtype=src.dtype)
    return out.index_add_(0, seg, src)
def _pad(x, pw):
    flat = tuple(v for pair in reversed(pw) for v in pair)
    return torch.nn.functional.pad(x, flat)

kernel_name = 'parallel_sum__mha_block_cached__dense_activation_silu__decode'

def setup_inputs():

    _w = (lambda a: (lambda t: t.to(torch.bfloat16) if t.is_floating_point() else t)(torch.as_tensor(a)))
    def _A_setup():
        B, Sq, D = 1, 1, 576
        H, Sk, Dh = 32, 32768, 128
        return {
            "x": _w((lambda *s: torch.randn(*s, dtype=torch.bfloat16) * 0.05)(B, Sq, D)),
            "k_cache": _w((lambda *s: torch.randn(*s, dtype=torch.bfloat16) * 3.2)(B, H, Sk, Dh)),
            "v_cache": _w((lambda *s: torch.randn(*s, dtype=torch.bfloat16) * 0.8)(B, H, Sk, Dh)),
            "wq": _w((lambda *s: torch.randn(*s, dtype=torch.bfloat16) * 3.2)(D, H * Dh) * (D ** -0.5)),
            "wo": _w((lambda *s: torch.randn(*s, dtype=torch.bfloat16) * 0.8)(H * Dh, D) * ((H * Dh) ** -0.5)),
        }
    _A_in = _A_setup()

    def _B_setup():
        B, S, D, F = 1, 1, 576, 4608
        return {
            "x": _w((lambda *s: torch.randn(*s, dtype=torch.bfloat16) * 0.05)(B, S, D)),
            "w1": _w((lambda *s: torch.randn(*s, dtype=torch.bfloat16) * 3.2)(D, F) * (D ** -0.5)),
            "w2": _w((lambda *s: torch.randn(*s, dtype=torch.bfloat16) * 0.4)(F, D) * (F ** -0.5)),
        }
    _B_in = _B_setup()

    return {
        "A_x": _A_in["x"],
        "A_k_cache": _A_in["k_cache"],
        "A_v_cache": _A_in["v_cache"],
        "A_wq": _A_in["wq"],
        "A_wo": _A_in["wo"],
        "B_x": _B_in["x"],
        "B_w1": _B_in["w1"],
        "B_w2": _B_in["w2"],
    }

def reference(A_x, A_k_cache, A_v_cache, A_wq, A_wo, B_x, B_w1, B_w2):
    def _A_ref(x, k_cache, v_cache, wq, wo):
        B, Sq, D = x.shape
        H, Dh = 32, 128
        q = (lambda x, *d: x.permute(*d))((x @ wq).reshape(B, Sq, H, Dh), 0, 2, 1, 3)
        scores = torch.einsum("bhqd,bhkd->bhqk", q, k_cache) * (Dh ** -0.5)
        p = _softmax(scores, axis=-1)
        o = torch.einsum("bhqk,bhkd->bhqd", p, v_cache)
        return (lambda x, *d: x.permute(*d))(o, 0, 2, 1, 3).reshape(B, Sq, H * Dh) @ wo

    def _B_ref(x, w1, w2):
        h = torch.einsum("bsd,df->bsf", x, w1)
        h = _silu(h)
        out = torch.einsum("bsf,fd->bsd", h, w2)
        return out

    x = A_x
    xn = _layernorm(x, axis=-1)
    return x + _A_ref(xn, A_k_cache, A_v_cache, A_wq, A_wo) + _B_ref(xn, B_w1, B_w2)
```

```python
import re
KNAME = "parallel_sum__mha_block_cached__dense_activation_silu__decode"

TRANS = ("v_exp_f32", "v_log_f32", "v_rcp_f32", "v_rsq_f32", "v_sqrt_f32", "v_sin_f32", "v_cos_f32")

def regs_of(op):
    op = op.strip()
    if op.startswith("-"): op = op[1:]
    if op.startswith("abs(") or op.startswith("|"): op = op.strip("abs()|")
    m = re.fullmatch(r"([vsa])\[(\d+):(\d+)\]", op)
    if m: return {f"{m.group(1)}{i}" for i in range(int(m.group(2)), int(m.group(3)) + 1)}
    m = re.fullmatch(r"([vsa])(\d+)", op)
    if m: return {op}
    if op == "vcc": return {"vcc"}
    if op in ("vcc_lo", "vcc_hi"): return {"vcc"}
    if op in ("exec", "exec_lo", "exec_hi"): return {"exec"}
    if op == "m0": return {"m0"}
    return set()

class Ins:
    def __init__(self, text):
        self.text = text
        t = text.split(";")[0].strip()
        self.label = t[:-1] if t.endswith(":") else None
        self.op = None; self.dst = set(); self.src = set(); self.cls = None
        self.dpp = False; self.srcC = set(); self.srcAB = set(); self.sgpr_src = set(); self.store_data = set()
        self.branch = None
        if self.label is not None or not t:
            self.cls = "label" if self.label else "none"; return
        parts = t.split(None, 1)
        op = parts[0]; self.op = op
        rest = parts[1] if len(parts) > 1 else ""
        ops = [o.strip() for o in re.split(r",(?![^\[]*\])", rest)] if rest else []
        mods = ""
        if ops:
            last = ops[-1].split(None, 1)
            ops[-1] = last[0]
            mods = last[1] if len(last) > 1 else ""
        self.mods = mods
        self.dpp = any(k in mods for k in ("row_", "quad_perm", "wave_")) or op.endswith("_dpp")
        base = op.replace("_dpp", "").replace("_e32", "").replace("_e64", "")
        self.base = base
        R = [regs_of(o) for o in ops]
        if op.startswith("s_"):
            self.cls = "salu"
            if op.startswith(("s_branch", "s_cbranch")):
                self.branch = ops[0]; self.cls = "branch"
            elif op.startswith(("s_cmp", "s_waitcnt", "s_barrier", "s_nop", "s_sleep", "s_endpgm", "s_setprio")):
                for r in R: self.src |= r
                if op == "s_nop": self.nop = int(ops[0], 0) + 1
            elif op.startswith("s_load") or op.startswith("s_memtime") or op.startswith("s_memrealtime"):
                self.cls = "smem"; self.dst = R[0]
                for r in R[1:]: self.src |= r
            else:
                self.dst = R[0]
                for r in R[1:]: self.src |= r
                if "saveexec" in op: self.dst |= {"exec"}
        elif op.startswith("buffer_"):
            self.cls = "vmem"
            if "load" in op:
                self.dst = R[0]
                for r in R[1:]: self.src |= r
            else:
                for r in R: self.src |= r
                if "store" in op and ("x3" in op or "x4" in op): self.store_data = R[0]
                if "atomic" in op and "sc0" in mods: self.dst = R[0]
            self.sgpr_src = {x for x in self.src if x[0] == "s"}
        elif op.startswith("ds_"):
            self.cls = "ds"
            if op.startswith("ds_read") or "bpermute" in op or "swizzle" in op:
                self.dst = R[0]
                for r in R[1:]: self.src |= r
            else:
                for r in R: self.src |= r
        elif op.startswith("v_mfma"):
            self.cls = "mfma"
            self.dst = R[0]; self.srcAB = R[1] | R[2]; self.srcC = R[3]; self.src = self.srcAB | self.srcC
        elif op.startswith("v_"):
            self.cls = "valu"
            if base.startswith("v_dot"): self.cls = "dot"
            self.dst = R[0]
            for r in R[1:]: self.src |= r
            if base.startswith("v_cmp"):
                pass
            if base.startswith(("v_fmac", "v_dot2c")):
                self.src |= self.dst
            if base.startswith("v_permlane") and "swap" in base:
                self.dst = R[0] | R[1]; self.src = R[0] | R[1]
            if base == "v_cndmask_b32" and len(ops) == 3:
                self.src |= {"vcc"}
            if base.startswith("v_dot2_"):
                self.srcC = R[3]; self.srcAB = R[1] | R[2]
            if base.startswith("v_dot2c"):
                self.srcC = R[0]; self.srcAB = R[1] | R[2]
            if self.dpp:
                self.dppsrc = R[1]
        else:
            raise ValueError("unknown instr " + text)
    @property
    def states(self):
        if self.cls in ("label", "none"): return 0
        if self.op == "s_nop": return self.nop
        return 1
    def is_valu(self): return self.cls in ("valu", "dot")

def isv(r): return r[0] in "va" and r not in ("vcc",)
def iss(r): return (r[0] == "s") or r == "vcc"

def need(p, c):
    n = 0
    pv = {r for r in p.dst if isv(r)}
    ps = {r for r in p.dst if iss(r)}
    if p.is_valu():
        if c.is_valu() and c.dpp and (pv & (c.src | c.dst)): n = max(n, 2)
        if c.cls == "mfma" and (pv & c.src): n = max(n, 2)
        if c.is_valu() and c.base in ("v_readlane_b32", "v_readfirstlane_b32") and (pv & c.src): n = max(n, 1)
        if c.is_valu() and c.base.startswith("v_permlane") and (pv & c.src): n = max(n, 2)
        if p.base in TRANS and c.is_valu() and c.base not in TRANS and (pv & c.src): n = max(n, 1)
        if p.base in TRANS and c.cls in ("vmem", "ds") and (pv & c.src): n = max(n, 1)
        if ps:
            if c.is_valu() and (ps & c.src): n = max(n, 4 if c.base in ("v_readlane_b32", "v_writelane_b32") else 2)
            if c.cls == "vmem" and (ps & c.src): n = max(n, 5)
            if c.cls in ("salu", "branch", "smem") and (ps & c.src): n = max(n, 1)
            if c.cls == "branch" and "vcc" in ps and "vcc" in c.op: n = max(n, 1)
    if p.cls == "dot":
        if c.is_valu() or c.cls in ("mfma", "vmem", "ds"):
            if c.cls == "dot" and c.base == p.base:
                if pv & c.srcAB: n = max(n, 3)
            elif pv & (c.src | c.dst): n = max(n, 3)
    if p.cls == "mfma":
        passes = 4 if "16x16x32" in p.op or "16x16x16" in p.op else 8
        big = {4: 8, 8: 12}[passes]; ovl = {4: 6, 8: 10}[passes]; war = {4: 3, 8: 7}[passes]
        if c.cls == "mfma":
            if pv & c.srcAB: n = max(n, big)
            if pv & c.srcC and c.srcC != pv: n = max(n, ovl)
        elif c.is_valu():
            if pv & (c.src | c.dst): n = max(n, big)
            if p.srcC & c.dst: n = max(n, war)
        elif c.cls in ("vmem", "ds"):
            if pv & (c.src | c.dst): n = max(n, big)
    if p.cls == "vmem" and p.store_data and c.is_valu() and (p.store_data & c.dst): n = max(n, 2)
    if p.cls == "vmem" and p.store_data and c.cls in ("mfma", "ds", "vmem") and (p.store_data & c.dst): n = max(n, 1)
    return n

WIN = 14
def fix(ins):
    out = []
    for c in ins:
        if c.cls not in ("label", "none"):
            req = 0; dist = 0
            for p in reversed(out):
                if dist >= WIN: break
                if p.cls in ("label", "none"): continue
                k = need(p, c)
                if k > dist: req = max(req, k - dist)
                dist += p.states
            while req > 0:
                k = min(req, 16)
                out.append(Ins(f"s_nop {k-1}")); req -= k
        out.append(c)
    return out

def check_branches(ins):
    pos = {x.label: i for i, x in enumerate(ins) if x.label}
    errs = []
    for i, b in enumerate(ins):
        if b.cls != "branch": continue
        tgt = pos[b.branch]
        before = [x for x in ins[max(0, i - 3 * WIN):i + 1] if x.cls not in ("label", "none")]
        after = [x for x in ins[tgt:tgt + 3 * WIN] if x.cls not in ("label", "none")]
        d_after = 0
        for c in after:
            if d_after >= WIN: break
            dist = d_after
            for p in reversed(before):
                if dist >= WIN: break
                k = need(p, c)
                if k > dist: errs.append((b.text, p.text, c.text, k, dist))
                dist += p.states
            d_after += c.states
            if c.cls == "branch" and c.op == "s_branch": break
    return errs

class Emit:
    def __init__(self):
        self.ins = []
        self.vm = []
        self.nl = 0
        self.seen = set()
    def __call__(self, s):
        for l in s.split("\n"):
            l = l.strip()
            if l: self.ins.append(Ins(l))
    def label(self, name): self.ins.append(Ins(name + ":"))
    def newlabel(self, base="L"):
        self.nl += 1; return f"{base}_{self.nl}"
    def c(self, text): self.ins.append(Ins("; " + text))
    def vmem(self, text, tag=None):
        self(text); self.vm.append(tag); self.seen.add(tag)
    def wait_vm(self, tag):
        assert tag in self.seen, tag
        if tag not in self.vm: return
        idx = max(i for i, t in enumerate(self.vm) if t == tag)
        n = len(self.vm) - 1 - idx
        assert n <= 63, n
        self(f"s_waitcnt vmcnt({n})")
        self.vm = self.vm[idx + 1:]
    def wait_vm_all(self):
        self("s_waitcnt vmcnt(0)"); self.vm = []
    def text(self):
        ins = fix(self.ins)
        errs = check_branches(ins)
        if errs:
            for e in errs: print("BRANCH HAZARD:", e)
            raise SystemExit("hazards on branch edges")
        out = []
        for x in ins:
            out.append(x.text if x.cls in ("label",) else "    " + x.text)
        return "\n".join(out) + "\n"

def wrap(kernels, launches, header=""):
    s = header
    for l in launches: s += l + "\n"
    s += '.amdgcn_target "amdgcn-amd-amdhsa--gfx950"\n.text\n'
    for name, body, vgpr, sgpr, accum in kernels:
        s += f".globl {name}\n.p2align 8\n.type {name},@function\n{name}:\n{body}"
    s += '.section .rodata,"a"\n'
    for name, body, vgpr, sgpr, accum in kernels:
        s += f""".p2align 6
.amdhsa_kernel {name}
  .amdhsa_next_free_vgpr {vgpr}
  .amdhsa_next_free_sgpr {sgpr}
  .amdhsa_accum_offset {accum}
  .amdhsa_group_segment_fixed_size 0
  .amdhsa_kernarg_size 88
  .amdhsa_user_sgpr_count 2
  .amdhsa_user_sgpr_kernarg_segment_ptr 1
  .amdhsa_system_sgpr_workgroup_id_x 1
.end_amdhsa_kernel
"""
    return s
```

```python
import sys, json
from emit import *

NWG = 256
REC, PART, YA, YB, STAMP, EPOCH = 0, 0x80000, 0x180000, 0x1B0000, 0x1E0000, 0x1F0000
WS_BYTES = 0x200000
OOB = 0x40000000
L_S = 0
L_PP = 16384
L_Q = 20736
L_H = 20992
L_ST = 22016
L_YP = 24128
LDS_BYTES = 26176
SPIN = 200000

def gen(L=8, STAG=5, stamps=False, hmap=2, poll_sleep=1, pst=False, pre=(1, 1, 1), vtouch=False, kflags="nt", wflags="nt"):
    NSLOT = 16
    a = Emit()
    vTID, vLANE, vKV, vT0 = "v0", "v1", "v2", "v3"
    Q = ["v4", "v5", "v6", "v7"]
    M = ["v8", "v9", "v10", "v11"]
    ACC = 12
    A0, A1 = 16, 20
    T = ["v24", "v25", "v26", "v27"]
    va, vb = "v28", "v29"
    E = ["v30", "v31", "v32", "v33"]
    F0 = "v34"
    vS, vMrun, vL, vNegm, vPP, vSn, vSaddr = "v36", "v37", "v38", "v39", "v40", "v41", "v42"
    vYoff = "v43"
    vG, vC = "v44", "v45"
    t1, t2, t3, t4 = "v46", "v47", "v57", "v58"
    X = [f"v{48+i}" for i in range(9)]
    vNon = "v59"
    t5, t6, t7, t8 = "v60", "v61", "v62", "v63"
    vXC = "v35"
    RING = 64
    NR = NSLOT // 4
    WREG = RING + 4 * NSLOT
    if NSLOT == 16:
        WQ, W1R, W2R, WOR = WREG, WREG + 20, WREG + 60, WREG + 96
    else:
        WQ, W1R, W2R, WOR = WREG, WREG + 20, WREG, WREG
    assert L % 4 == 0 and L <= NSLOT
    def r4(base): return f"v[{base}:{base+3}]"
    sW, sH, sS, sF = "s30", "s31", "s4", "s5"
    SRD_X, SRD_WS, SRD_DBG, SRD_KV, SRD_W1, SRD_WQ, SRD_WO, SRD_OUT, SRD_W2 = \
        "s[32:35]", "s[36:39]", "s[40:43]", "s[44:47]", "s[48:51]", "s[52:55]", "s[56:59]", "s[60:63]", "s[76:79]"
    sVlo, sVhi, sRoff, sNr, sCnt = "s64", "s65", "s66", "s67", "s68"
    sScale, sLog2e = "s86", "s87"
    sA, sB, sC_, sD = "s69", "s70", "s71", "s72"
    sSpin = "s73"
    sDesA, sDesB = "s74", "s75"
    mask2, mask1 = "s[80:81]", "s[82:83]"

    def srd(base_s, lo, hi, nrec):
        a(f"s_mov_b32 s{base_s}, {lo}")
        a(f"s_and_b32 s{base_s+1}, {hi}, 0xffff")
        a(f"s_mov_b32 s{base_s+2}, {nrec}")
        a(f"s_mov_b32 s{base_s+3}, 0x20000")
    def srd_off(base_s, lo, hi, off_s, nrec):
        a(f"s_add_u32 s{base_s}, {lo}, {off_s}\ns_addc_u32 s{base_s+1}, {hi}, 0\ns_and_b32 s{base_s+1}, s{base_s+1}, 0xffff")
        a(f"s_mov_b32 s{base_s+2}, {nrec}\ns_mov_b32 s{base_s+3}, 0x20000")
    def stamp(idx):
        if stamps:
            a("s_memrealtime s[88:89]")
            a("s_waitcnt lgkmcnt(0)")
            a(f"s_mov_b32 s{90+idx}, s88")
    def allreduce(op, v, tmp):
        for r in (8, 4, 2, 1):
            a(f"{op}_dpp {v}, {v}, {v} row_ror:{r} row_mask:0xf bank_mask:0xf")
        a(f"v_mov_b32 {tmp}, {v}")
        a(f"v_permlane16_swap_b32 {v}, {tmp}")
        a(f"{op} {v}, {v}, {tmp}")
        a(f"v_mov_b32 {tmp}, {v}")
        a(f"v_permlane32_swap_b32 {v}, {tmp}")
        a(f"{op} {v}, {v}, {tmp}")
    def ands(dst, src, lane):
        for i in range(4):
            a(f"v_and_b32_dpp v{dst+i}, {src}, {M[i]} row_newbcast:{lane} row_mask:0xf bank_mask:0xf")
    def canon(regs, tmp):
        a(f"v_mov_b32 {tmp}, 0x7fc00000")
        for r in regs:
            a(f"v_cmp_eq_u32 vcc, -1, {r}")
            a(f"v_cndmask_b32 {r}, {r}, {tmp}, vcc")
    def any_empty(regs, tmp):
        regs = list(regs)
        a(f"v_max3_u32 {tmp}, {regs[0]}, {regs[1]}, {regs[2]}")
        k = 3
        while k < len(regs):
            if k + 1 < len(regs):
                a(f"v_max3_u32 {tmp}, {tmp}, {regs[k]}, {regs[k+1]}"); k += 2
            else:
                a(f"v_max_u32 {tmp}, {tmp}, {regs[k]}"); k += 1
        a(f"v_cmp_eq_u32 vcc, -1, {tmp}")
    def tags_bad(tags, tmp1, tmp2):
        tags = list(tags)
        for op, tmp in (("min", tmp1), ("max", tmp2)):
            a(f"v_{op}3_u32 {tmp}, {tags[0]}, {tags[1]}, {vNon}")
            k = 2
            while k < len(tags):
                if k + 1 < len(tags):
                    a(f"v_{op}3_u32 {tmp}, {tmp}, {tags[k]}, {tags[k+1]}"); k += 2
                else:
                    a(f"v_{op}_u32 {tmp}, {tmp}, {tags[k]}"); k += 1
        a(f"v_cmp_ne_u32 vcc, {tmp1}, {tmp2}")
    def spin_tail(label, sleep):
        a(f"s_cbranch_vccz {label}_ok")
        a(f"s_sub_u32 {sSpin}, {sSpin}, 1\ns_cmp_eq_u32 {sSpin}, 0\ns_cbranch_scc1 {label}_ok")
        if sleep: a(f"s_sleep {sleep}")
        a(f"s_branch {label}")
        a.label(f"{label}_ok")

    a(f"s_cmp_ge_u32 s2, {NWG}")
    a("s_cbranch_scc1 L_end")
    a("s_load_dwordx16 s[8:23], s[0:1], 0")
    a("s_load_dwordx4 s[24:27], s[0:1], 64")
    a("s_load_dwordx2 s[28:29], s[0:1], 80")
    a(f"v_and_b32 {vLANE}, 63, {vTID}")
    a(f"v_lshrrev_b32 {vT0}, 6, {vTID}")
    a(f"v_lshrrev_b32 {vG}, 4, {vLANE}")
    a(f"v_readfirstlane_b32 {sW}, {vT0}")
    a(f"v_and_b32 {vC}, 15, {vLANE}")
    a(f"v_and_b32 {t1}, 1, {vC}")
    a(f"v_lshlrev_b32 {t1}, 4, {t1}")
    a(f"v_mov_b32 {t2}, 0xffff")
    a(f"v_lshlrev_b32 {t1}, {t1}, {t2}")
    a(f"v_lshrrev_b32 {t2}, 1, {vC}")
    for i in range(4):
        a(f"v_cmp_eq_u32 vcc, {i}, {t2}")
        a(f"v_cndmask_b32 {M[i]}, 0, {t1}, vcc")
    a("s_mov_b32 s80, 0xcccccccc\ns_mov_b32 s81, 0xcccccccc\ns_mov_b32 s82, 0xaaaaaaaa\ns_mov_b32 s83, 0xaaaaaaaa")
    a(f"s_mov_b32 {sScale}, 0x3db504f3\ns_mov_b32 {sLog2e}, 0x3fb8aa3b")
    if hmap == 0:
        a(f"s_and_b32 {sH}, s2, 31\ns_lshr_b32 {sS}, s2, 5")
    else:
        a(f"s_lshr_b32 {sH}, s2, 3\ns_and_b32 {sS}, s2, 7")
    a(f"s_lshl_b32 {sF}, {sH}, 3\ns_add_u32 {sF}, {sF}, {sS}")
    a(f"s_and_b32 {sA}, {sH}, 7\ns_cmp_eq_u32 {sA}, {sS}\ns_cselect_b32 {sDesA}, 1, 0")
    a(f"s_add_u32 {sA}, {sH}, 4\ns_and_b32 {sA}, {sA}, 7\ns_cmp_eq_u32 {sA}, {sS}\ns_cselect_b32 {sDesB}, 1, 0")
    a(f"v_lshlrev_b32 {t8}, 1, {vLANE}")
    a(f"s_mul_i32 {sA}, {sS}, 72\ns_lshl_b32 {sB}, {sW}, 2\ns_add_u32 {sA}, {sA}, {sB}")
    a(f"v_lshl_add_u32 {t7}, {vC}, 4, {vG}")
    a(f"v_add_u32 {t7}, {sA}, {t7}")
    a(f"v_lshlrev_b32 {t7}, 1, {t7}")
    a(f"v_add_u32 {t6}, {sA}, {vG}")
    a(f"v_lshlrev_b32 {t5}, 13, {t6}")
    a(f"v_lshl_add_u32 {t5}, {vC}, 4, {t5}")
    a(f"s_lshl_b32 {sA}, {sH}, 8")
    a(f"v_add_u32 {t5}, {sA}, {t5}")
    a(f"s_movk_i32 {sB}, 9216")
    a(f"v_mul_lo_u32 {t4}, {t6}, {sB}")
    a(f"v_lshl_add_u32 {t4}, {vC}, 4, {t4}")
    a(f"s_mul_i32 {sA}, {sH}, 288")
    a(f"v_add_u32 {t4}, {sA}, {t4}")
    a(f"v_mov_b32 {t2}, {OOB}")
    a(f"v_cmp_gt_u32 vcc, 9, {vC}")
    a(f"v_cndmask_b32 {t4}, {t2}, {t4}, vcc")
    a(f"s_lshl_b32 {sA}, {sW}, 12")
    a(f"v_lshl_add_u32 {vKV}, {vLANE}, 4, {sA}")
    a(f"s_mul_i32 {sA}, {sH}, 4608")
    a(f"s_lshl_b32 {sB}, {sS}, 9\ns_add_u32 {sB}, {sB}, {sA}")
    a(f"s_add_u32 {sA}, {sA}, 4096")
    a(f"v_and_b32 {t1}, 15, {vLANE}\nv_lshlrev_b32 {t1}, 5, {t1}")
    a(f"s_add_u32 {sC_}, {sB}, {YA}")
    a(f"v_add_u32 {vYoff}, {sC_}, {t1}")
    a(f"s_add_u32 {sC_}, {sA}, {YA}\ns_cmp_eq_u32 {sDesA}, 1\ns_cselect_b32 {sC_}, {sC_}, {OOB}")
    a(f"v_add_u32 {t3}, {sC_}, {t1}")
    a(f"v_cmp_eq_u32 vcc, 1, {vG}\nv_cndmask_b32 {vYoff}, {vYoff}, {t3}, vcc")
    a(f"s_add_u32 {sC_}, {sB}, {YB}")
    a(f"v_add_u32 {t3}, {sC_}, {t1}")
    a(f"v_cmp_eq_u32 vcc, 2, {vG}\nv_cndmask_b32 {vYoff}, {vYoff}, {t3}, vcc")
    a(f"s_add_u32 {sC_}, {sA}, {YB}\ns_cmp_eq_u32 {sDesB}, 1\ns_cselect_b32 {sC_}, {sC_}, {OOB}")
    a(f"v_add_u32 {t3}, {sC_}, {t1}")
    a(f"v_cmp_eq_u32 vcc, 3, {vG}\nv_cndmask_b32 {vYoff}, {vYoff}, {t3}, vcc")
    a(f"v_mov_b32 {t1}, {EPOCH}")
    a(f"s_mul_i32 {sRoff}, s2, {STAG}\ns_and_b32 {sRoff}, {sRoff}, 63\ns_lshl_b32 {sRoff}, {sRoff}, 14")
    a(f"s_mov_b32 {sNr}, 0")
    a("s_waitcnt lgkmcnt(0)")
    if stamps:
        for i in range(8): a(f"s_mov_b32 s{90+i}, 0")
        stamp(0)
    srd(32, "s8", "s9", 1152)
    srd(36, "s28", "s29", WS_BYTES)
    srd(52, "s14", "s15", 576 * 8192)
    srd(48, "s20", "s21", 576 * 9216)
    a.vmem(f"buffer_load_dword {vNon}, {t1}, {SRD_WS}, 0 offen sc1", "x")
    for b in range(9):
        a.vmem(f"buffer_load_ushort {X[b]}, {t8}, {SRD_X}, 0 offen offset:{128*b}", "x")
    a.vmem(f"buffer_load_ushort {vXC}, {t7}, {SRD_X}, 0 offen", "x")
    a(f"s_cmp_lt_u32 {sW}, 2\ns_cselect_b32 s84, {4*131072}, {OOB}\ns_cselect_b32 s85, {4*147456}, {OOB}")
    def wq_loads():
        for c in range(5):
            if c < 4: a(f"s_mov_b32 {sA}, {c*131072}")
            a.vmem(f"buffer_load_dwordx4 {r4(WQ+4*c)}, {t5}, {SRD_WQ}, {sA if c < 4 else 's84'} offen {wflags}", f"wq{c}")
    def w1_loads():
        for c in range(5):
            if c < 4: a(f"s_mov_b32 {sB}, {c*147456}")
            so_1 = sB if c < 4 else "s85"
            a.vmem(f"buffer_load_dwordx4 {r4(W1R+8*c)}, {t4}, {SRD_W1}, {so_1} offen {wflags}", f"w1a{c}")
            a.vmem(f"buffer_load_dwordx4 {r4(W1R+8*c+4)}, {t4}, {SRD_W1}, {so_1} offen offset:144 {wflags}", f"w1b{c}")
    wq_loads()
    a(f"s_lshl_b32 {sA}, {sF}, 20")
    srd_off(44, "s10", "s11", sA, "0x100000")
    a(f"s_add_u32 {sVlo}, s12, {sA}\ns_addc_u32 {sVhi}, s13, 0\ns_and_b32 {sVhi}, {sVhi}, 0xffff")
    def issue_round(slot_round, track=None):
        a(f"s_cmp_eq_u32 {sNr}, 64")
        a(f"s_cselect_b32 s44, {sVlo}, s44\ns_cselect_b32 s45, {sVhi}, s45")
        a(f"s_cmp_ge_u32 {sNr}, 128")
        a(f"s_cselect_b32 s46, 0, s46")
        for u in range(4):
            r = RING + 16 * slot_round + 4 * u
            txt = f"buffer_load_dwordx4 {r4(r)}, {vKV}, {SRD_KV}, {sRoff} offen offset:{1024*u} {kflags}"
            if track: a.vmem(txt, track)
            else: a(txt)
        a(f"s_add_u32 {sRoff}, {sRoff}, 16384\ns_and_b32 {sRoff}, {sRoff}, 0xfffff\ns_add_u32 {sNr}, {sNr}, 1")
    npre = [0]
    def prefetch(n):
        for _ in range(n):
            if npre[0] < NR:
                issue_round(npre[0], f"kv{npre[0]}"); npre[0] += 1
    a(f"s_mul_i32 {sA}, {sH}, {128*1152}")
    srd_off(56, "s16", "s17", sA, 128 * 1152)
    a(f"s_mul_i32 {sA}, {sH}, {144*1152}")
    srd_off(76, "s22", "s23", sA, 144 * 1152)
    if vtouch:
        a(f"s_mov_b32 s60, {sVlo}\ns_mov_b32 s61, {sVhi}\ns_mov_b32 s62, 0x100000\ns_mov_b32 s63, 0x20000")
        a(f"v_mov_b32 {t1}, 0")
        a.vmem(f"buffer_load_dword {t8}, {t1}, {SRD_OUT}, 0 offen nt", "vt")
    a.wait_vm("x")
    if pst: stamp(1)
    w1_loads()
    a(f"v_add_u32 {vNon}, 1, {vNon}")
    for b in range(9): a(f"v_lshlrev_b32 {X[b]}, 16, {X[b]}")
    a(f"v_lshlrev_b32 {vXC}, 16, {vXC}")
    a(f"v_add_f32 {t1}, {X[0]}, {X[1]}")
    for b in range(2, 9): a(f"v_add_f32 {t1}, {t1}, {X[b]}")
    allreduce("v_add_f32", t1, t2)
    a(f"v_mul_f32 {t1}, 0x3ae38e39, {t1}")
    a(f"v_sub_f32 {t2}, {X[0]}, {t1}")
    a(f"v_mul_f32 {t3}, {t2}, {t2}")
    for b in range(1, 9):
        a(f"v_sub_f32 {t2}, {X[b]}, {t1}")
        a(f"v_fmac_f32 {t3}, {t2}, {t2}")
    allreduce("v_add_f32", t3, t2)
    a(f"v_mul_f32 {t3}, 0x3ae38e39, {t3}")
    a(f"v_cvt_pk_bf16_f32 {t1}, 0, {t1}")
    a(f"v_cvt_pk_bf16_f32 {t3}, 0, {t3}")
    a(f"v_add_f32 {t3}, 0x3727c5ac, {t3}")
    a(f"v_cvt_pk_bf16_f32 {t3}, 0, {t3}")
    a(f"v_sqrt_f32 {t3}, {t3}")
    a(f"v_cvt_pk_bf16_f32 {t3}, 0, {t3}")
    a(f"v_rcp_f32 {t6}, {t3}")
    a(f"v_sub_f32 {t2}, {vXC}, {t1}")
    a(f"v_cvt_pk_bf16_f32 {t2}, 0, {t2}")
    a(f"v_fma_f32 {t7}, -{t3}, {t6}, 1.0")
    a(f"v_fma_f32 {t6}, {t7}, {t6}, {t6}")
    a(f"v_mul_f32 {t7}, {t2}, {t6}")
    a(f"v_fma_f32 {t8}, -{t7}, {t3}, {t2}")
    a(f"v_fma_f32 {t7}, {t8}, {t6}, {t7}")
    a(f"v_cvt_pk_bf16_f32 {vXC}, {t7}, {t7}")
    if pst: stamp(2)
    prefetch(pre[0])
    AQ, AF0, AF1 = ACC, 24, 28
    for c in range(5):
        As = A0 if c % 2 == 0 else A1
        ands(As, vXC, c)
        for (acc, reg, tag) in ((AQ, WQ + 4*c, f"wq{c}"), (AF0, W1R + 8*c, f"w1a{c}"), (AF1, W1R + 8*c + 4, f"w1b{c}")):
            a.wait_vm(tag)
            cin = "0" if c == 0 else r4(acc)
            a(f"v_mfma_f32_16x16x32_bf16 {r4(acc)}, {r4(As)}, {r4(reg)}, {cin}")
    def unit_voff(dst, des, rows_per_wave):
        a(f"s_lshl_b32 {sA}, {sS}, 7")
        a(f"v_lshl_add_u32 {dst}, {vC}, 4, {sA}")
        a(f"s_cmp_eq_u32 {des}, 1\ns_cselect_b32 {sA}, {1024 - 128}, {OOB}")
        a(f"v_lshl_add_u32 {t2}, {vC}, 4, {sA}")
        a(f"v_cmp_gt_u32 vcc, 8, {vC}")
        a(f"v_cndmask_b32 {dst}, {t2}, {dst}, vcc")
        a(f"s_mul_i32 {sA}, {sW}, {rows_per_wave*1152}")
        a(f"v_mul_u32_u24 {t2}, 1152, {vG}")
        a(f"v_add3_u32 {dst}, {dst}, {t2}, {sA}")
    a(f"v_lshlrev_b32 {t1}, 5, {vC}")
    a(f"v_lshl_add_u32 {t1}, {vG}, 4, {t1}")
    a(f"s_mul_i32 {sA}, {sW}, 1088")
    a(f"v_add_u32 {t1}, {sA}, {t1}")
    a("s_mov_b32 exec_hi, 0")
    a(f"ds_write_b128 {t1}, {r4(AQ)} offset:{L_PP}")
    a("s_mov_b32 exec_lo, 0x01ff01ff")
    a(f"ds_write_b128 {t1}, {r4(AF0)} offset:{L_PP + 512}")
    a(f"ds_write_b128 {t1}, {r4(AF1)} offset:{L_PP + 512 + 288}")
    a("s_mov_b64 exec, -1")
    prefetch(pre[1])
    a("s_waitcnt lgkmcnt(0)")
    a("s_barrier")
    if pst: stamp(3)
    a(f"v_min_u32 {t1}, 67, {vTID}\nv_lshlrev_b32 {t1}, 4, {t1}")
    for w in range(4):
        a(f"ds_read_b128 {r4(16+4*w)}, {t1} offset:{L_PP + 1088*w}")
    a(f"s_lshl_b32 {sB}, {sF}, 12\ns_add_u32 {sB}, {sB}, {PART}")
    a(f"v_lshl_add_u32 {t2}, {vTID}, 5, {sB}")
    a(f"v_mov_b32 {t3}, {OOB}\nv_mov_b32 {t4}, 68")
    a(f"v_cmp_lt_u32 vcc, {vTID}, {t4}\nv_cndmask_b32 {t2}, {t3}, {t2}, vcc")
    a("s_waitcnt lgkmcnt(0)")
    for i in range(4):
        a(f"v_add_f32 v{16+i}, v{16+i}, v{20+i}")
        a(f"v_add_f32 v{24+i}, v{24+i}, v{28+i}")
    for i in range(4):
        a(f"v_add_f32 v{48+2*i}, v{16+i}, v{24+i}")
        a(f"v_mov_b32 v{49+2*i}, {vNon}")
    a.vmem(f"buffer_store_dwordx4 v[48:51], {t2}, {SRD_WS}, 0 offen sc1", "pub")
    a.vmem(f"buffer_store_dwordx4 v[52:55], {t2}, {SRD_WS}, 0 offen offset:16 sc1", "pub")
    prefetch(pre[2])
    if pst: stamp(4)
    GR = W1R
    a(f"v_lshlrev_b32 {t2}, 1, {vLANE}\ns_lshl_b32 {sB}, {sW}, 7\nv_add_u32 {t2}, {sB}, {t2}")
    a(f"v_min_u32 {t2}, 270, {t2}")
    a(f"s_lshl_b32 {sA}, {sH}, 15\ns_add_u32 {sA}, {sA}, {PART}")
    a(f"v_lshl_add_u32 {t5}, {t2}, 3, {sA}")
    def pg_loads(track):
        for r in range(8):
            a(f"s_mov_b32 {sA}, {4096*r}")
            txt = f"buffer_load_dwordx4 {r4(GR+4*r)}, {t5}, {SRD_WS}, {sA} offen sc1"
            if track: a.vmem(txt, "pg")
            else: a(txt)
    pgtags = [f"v{GR+4*r+k}" for r in range(8) for k in (1, 3)]
    pg_loads(True)
    unit_voff(t1, sDesB, 36)
    for j in range(9):
        a(f"s_mov_b32 {sA}, {4608*j}")
        a.vmem(f"buffer_load_dwordx4 {r4(W2R + 4*j)}, {t1}, {SRD_W2}, {sA} offen {wflags}", f"w2_{j}")
    prefetch(NR)
    a.wait_vm("pg")
    a(f"s_mov_b32 {sSpin}, {SPIN}")
    a("s_branch L_pg_t")
    a.label("L_pg")
    pg_loads(False)
    a("s_waitcnt vmcnt(0)")
    a.label("L_pg_t")
    tags_bad(pgtags, t6, t7)
    spin_tail("L_pg", poll_sleep)
    a(f"v_mov_b32 v16, v{GR}\nv_mov_b32 v17, v{GR+2}")
    for r in range(1, 8):
        a(f"v_add_f32 v16, v16, v{GR+4*r}")
        a(f"v_add_f32 v17, v17, v{GR+4*r+2}")
    a(f"s_cmp_eq_u32 {sW}, 0\ns_cbranch_scc0 L_pg_h")
    a("v_cvt_pk_bf16_f32 v16, v16, v17")
    a(f"v_lshlrev_b32 {t1}, 2, {vLANE}")
    a(f"ds_write_b32 {t1}, v16 offset:{L_Q}")
    a("s_branch L_pg_done")
    a.label("L_pg_h")
    a(f"s_cmp_eq_u32 {sW}, 3\ns_cbranch_scc1 L_pg_done")
    for i in (16, 17):
        a(f"v_cvt_pk_bf16_f32 v{i}, 0, v{i}")
    for i in (16, 17):
        a(f"v_mul_f32 v{i+2}, {sLog2e}, v{i}")
        a(f"v_sub_f32 v{i+2}, 0, v{i+2}")
        a(f"v_exp_f32 v{i+2}, v{i+2}")
    for i in (16, 17):
        a(f"v_add_f32 v{i+2}, 1.0, v{i+2}")
        a(f"v_rcp_f32 v{i+2}, v{i+2}")
    for i in (16, 17):
        a(f"v_mul_f32 v{i}, v{i}, v{i+2}")
    for i in (16, 17):
        a(f"v_cvt_pk_bf16_f32 v{i}, v{i}, v{i}")
    a(f"s_sub_u32 {sA}, {sW}, 1\ns_lshl_b32 {sA}, {sA}, 9")
    a(f"v_lshl_add_u32 {t1}, {vLANE}, 3, {sA}")
    a(f"ds_write_b64 {t1}, v[16:17] offset:{L_H}")
    a.label("L_pg_done")
    a("s_waitcnt lgkmcnt(0)")
    a("s_barrier")
    a(f"v_lshlrev_b32 {t1}, 4, {vC}")
    a(f"ds_read_b128 v[4:7], {t1} offset:{L_Q}")
    a(f"s_mul_i32 {sA}, {sW}, 4096")
    a(f"v_lshl_add_u32 {vSaddr}, {vLANE}, 2, {sA}")
    a(f"v_mov_b32 {vMrun}, 0xff800000")
    a("s_waitcnt lgkmcnt(0)")
    if stamps: stamp(5 if pst else 1)

    NGRP = NSLOT // 16
    NPASS = 16 // NGRP
    def kgroup(gi, first, issue_from):
        for rr in range(4):
            rho = 4 * gi + rr
            if first:
                tag = f"kv{rho}"
                if tag in a.vm: a.wait_vm(tag)
            else:
                a(f"s_waitcnt vmcnt({L-4})")
            for i in range(4):
                for u in range(4):
                    r = RING + 16 * rho + 4 * u + i
                    cin = "0" if i == 0 else T[u]
                    a(f"v_dot2_f32_bf16 {T[u]}, v{r}, {Q[i]}, {cin}")
            if not first or rho >= issue_from:
                issue_round((rho + L // 4) % NR, "kvn" if first else None)
            a(f"v_add_f32_dpp {va}, {T[0]}, {T[0]} row_ror:8 row_mask:0xf bank_mask:0x3")
            a(f"v_add_f32_dpp {vb}, {T[2]}, {T[2]} row_ror:8 row_mask:0xf bank_mask:0x3")
            a(f"v_add_f32_dpp {va}, {T[1]}, {T[1]} row_ror:8 row_mask:0xf bank_mask:0xc")
            a(f"v_add_f32_dpp {vb}, {T[3]}, {T[3]} row_ror:8 row_mask:0xf bank_mask:0xc")
            a(f"v_add_f32_dpp {E[rr]}, {va}, {va} row_half_mirror row_mask:0xf bank_mask:0x5")
            a(f"v_add_f32_dpp {E[rr]}, {vb}, {vb} row_half_mirror row_mask:0xf bank_mask:0xa")
        for k in range(4):
            a(f"v_add_f32_dpp {T[k]}, {E[k]}, {E[k]} quad_perm:[2,3,0,1] row_mask:0xf bank_mask:0xf")
        a(f"v_cndmask_b32 {F0}, {T[0]}, {T[1]}, {mask2}")
        a(f"v_cndmask_b32 {t1}, {T[2]}, {T[3]}, {mask2}")
        a(f"v_add_f32_dpp {va}, {F0}, {F0} quad_perm:[1,0,3,2] row_mask:0xf bank_mask:0xf")
        a(f"v_add_f32_dpp {vb}, {t1}, {t1} quad_perm:[1,0,3,2] row_mask:0xf bank_mask:0xf")
        a(f"v_cndmask_b32 {vS}, {va}, {vb}, {mask1}")
        a(f"v_cvt_pk_bf16_f32 {vS}, 0, {vS}")
        a(f"v_mul_f32 {vS}, {sScale}, {vS}")
        a(f"v_cvt_pk_bf16_f32 {vS}, 0, {vS}")
        a(f"v_max_f32 {vMrun}, {vMrun}, {vS}")
        a(f"ds_write_b32 {vSaddr}, {vS} offset:{L_S}")
        a(f"v_add_u32 {vSaddr}, 256, {vSaddr}")
    for gi in range(NGRP): kgroup(gi, True, NR - L // 4)
    a(f"v_lshlrev_b32 {t1}, 4, {vC}")
    a(f"v_lshl_add_u32 {t1}, {vG}, 2, {t1}")
    a(f"s_mul_i32 {sA}, {sW}, 144")
    a(f"v_add_u32 {t1}, {sA}, {t1}")
    a(f"ds_read_b32 {vPP}, {t1} offset:{L_H}")
    if "w2_8" in a.vm: a.wait_vm("w2_8")
    a("s_waitcnt lgkmcnt(0)")
    for j in range(9):
        As = A0 if j % 2 == 0 else A1
        ands(As, vPP, j)
        cin = "0" if j == 0 else r4(ACC)
        a(f"v_mfma_f32_16x16x32_bf16 {r4(ACC)}, {r4(As)}, {r4(W2R + 4*j)}, {cin}")
    unit_voff(t1, sDesA, 32)
    for j in range(8):
        a(f"s_mov_b32 {sA}, {4608*j}")
        a.vmem(f"buffer_load_dwordx4 {r4(WOR + 4*j)}, {t1}, {SRD_WO}, {sA} offen {wflags}", "wo")
    a(f"v_lshlrev_b32 {t1}, 5, {vC}")
    a(f"v_lshl_add_u32 {t1}, {vG}, 4, {t1}")
    a(f"s_lshl_b32 {sA}, {sW}, 9")
    a(f"v_add_u32 {t1}, {sA}, {t1}")
    a("s_mov_b32 exec_hi, 0")
    a(f"ds_write_b128 {t1}, {r4(ACC)} offset:{L_YP}")
    a("s_mov_b32 exec_hi, -1")
    a("s_waitcnt lgkmcnt(0)")
    a("s_barrier")
    a(f"s_cmp_lg_u32 {sW}, 0\ns_cbranch_scc1 L_yb_done")
    a(f"v_and_b32 {t1}, 31, {vLANE}\nv_lshlrev_b32 {t1}, 4, {t1}")
    for w in range(4):
        a(f"ds_read_b128 {r4(16+4*w)}, {t1} offset:{L_YP + 512*w}")
    a("s_waitcnt lgkmcnt(0)")
    for i in range(4):
        a(f"v_add_f32 v{16+i}, v{16+i}, v{20+i}")
        a(f"v_add_f32 v{24+i}, v{24+i}, v{28+i}")
    for i in range(4):
        a(f"v_add_f32 v{48+2*i}, v{16+i}, v{24+i}")
        a(f"v_mov_b32 v{49+2*i}, {vNon}")
    a("s_mov_b32 exec_lo, 0")
    a(f"buffer_store_dwordx4 v[48:51], {vYoff}, {SRD_WS}, 0 offen sc1")
    a(f"buffer_store_dwordx4 v[52:55], {vYoff}, {SRD_WS}, 0 offen offset:16 sc1")
    a("s_mov_b32 exec_lo, -1")
    a.label("L_yb_done")
    a(f"s_mov_b32 {sCnt}, {NPASS - 1}")
    a.label("L_kpass")
    for gi in range(NGRP): kgroup(gi, False, 0)
    a(f"s_sub_u32 {sCnt}, {sCnt}, 1\ns_cmp_lg_u32 {sCnt}, 0")
    a("s_cbranch_scc1 L_kpass")
    if stamps and not pst: stamp(2)
    a(f"v_subrev_u32 {vSaddr}, 4096, {vSaddr}")
    a("s_waitcnt lgkmcnt(0)")
    a(f"ds_read_b32 {vSn}, {vSaddr} offset:{L_S}")
    allreduce("v_max_f32", vMrun, t1)
    a(f"v_mul_f32 {vNegm}, {sLog2e}, {vMrun}")
    a(f"v_sub_f32 {vNegm}, 0, {vNegm}")
    a(f"v_mov_b32 {vL}, 0")
    for i in range(4): a(f"v_mov_b32 v{ACC+i}, 0")
    a(f"s_mov_b32 {sCnt}, {NPASS}")
    def cj(j):
        rho, u = j // 4, j % 4
        return 8 * (u & 1) + 4 * (u >> 1) + 2 * (rho & 1) + (rho >> 1)
    a.label("L_vpass")
    for gi in range(NGRP):
        a("s_waitcnt lgkmcnt(0)")
        a(f"v_fma_f32 {t1}, {vSn}, {sLog2e}, {vNegm}")
        a(f"v_add_u32 {vSaddr}, 256, {vSaddr}")
        a(f"v_exp_f32 {t1}, {t1}")
        a(f"ds_read_b32 {vSn}, {vSaddr} offset:{L_S}")
        a(f"v_cvt_pk_bf16_f32 {vPP}, {t1}, {t1}")
        a(f"v_add_f32 {vL}, {vL}, {t1}")
        ands(A0, vPP, cj(0))
        for rr in range(4):
            rho = 4 * gi + rr
            a(f"s_waitcnt vmcnt({L-4})")
            for u in range(4):
                j = 4 * rr + u
                As = A0 if j % 2 == 0 else A1
                An = A1 if j % 2 == 0 else A0
                if j + 1 < 16: ands(An, vPP, cj(j + 1))
                else: a("s_nop 1")
                a(f"v_mfma_f32_16x16x32_bf16 {r4(ACC)}, {r4(As)}, {r4(RING + 16*rho + 4*u)}, {r4(ACC)}")
            issue_round((rho + L // 4) % NR)
    a(f"s_sub_u32 {sCnt}, {sCnt}, 1\ns_cmp_lg_u32 {sCnt}, 0")
    a("s_cbranch_scc1 L_vpass")
    if stamps and not pst: stamp(3)
    allreduce("v_add_f32", vL, t1)
    a(f"v_lshlrev_b32 {t1}, 5, {vC}")
    a(f"v_lshl_add_u32 {t1}, {vG}, 4, {t1}")
    a(f"s_mul_i32 {sA}, {sW}, 528")
    a(f"v_add_u32 {t1}, {sA}, {t1}")
    a(f"v_mov_b32 {t2}, {sA}")
    a("s_mov_b32 exec_hi, 0")
    a(f"ds_write_b128 {t1}, {r4(ACC)} offset:{L_ST}")
    a("s_mov_b32 exec_hi, -1")
    a(f"v_mov_b32 v16, {vMrun}\nv_mov_b32 v17, {vL}")
    a(f"ds_write_b64 {t2}, v[16:17] offset:{L_ST + 512}")
    a("s_waitcnt lgkmcnt(0)")
    a("s_barrier")
    a(f"v_and_b32 {t1}, 31, {vLANE}")
    a(f"s_lshl_b32 {sA}, {sW}, 7")
    a(f"v_lshl_add_u32 {t1}, {t1}, 2, {sA}")
    a(f"v_mov_b32 {t2}, 0")
    for w in range(4):
        a(f"ds_read_b32 v{24+w}, {t1} offset:{L_ST + 528*w}")
        a(f"ds_read_b64 v[{16+2*w}:{17+2*w}], {t2} offset:{L_ST + 528*w + 512}")
    a("s_waitcnt lgkmcnt(0)")
    a("v_max_f32 v28, v16, v18\nv_max3_f32 v28, v28, v20, v22")
    for w in range(4):
        a(f"v_sub_f32 v{16+2*w}, v{16+2*w}, v28")
        a(f"v_mul_f32 v{16+2*w}, {sLog2e}, v{16+2*w}")
        a(f"v_exp_f32 v{16+2*w}, v{16+2*w}")
    a("v_mul_f32 v30, v16, v24\nv_mul_f32 v29, v16, v17")
    for w in range(1, 4):
        a(f"v_fmac_f32 v30, v{16+2*w}, v{24+w}")
        a(f"v_fmac_f32 v29, v{16+2*w}, v{17+2*w}")
    a(f"v_mov_b32 v31, {vNon}")
    a(f"v_mov_b32 v32, v28\nv_mov_b32 v33, {vNon}\nv_mov_b32 v34, v29\nv_mov_b32 v35, {vNon}")
    a(f"s_lshl_b32 {sA}, {sF}, 11")
    a(f"v_lshl_add_u32 {t1}, {t1}, 1, {sA}")
    a(f"s_add_u32 {sB}, {sA}, 1024\nv_mov_b32 {t2}, {sB}")
    a("s_mov_b32 exec_hi, 0")
    a(f"buffer_store_dwordx2 v[30:31], {t1}, {SRD_WS}, 0 offen sc1")
    a("s_mov_b64 exec, 1")
    a(f"buffer_store_dwordx4 v[32:35], {t2}, {SRD_WS}, 0 offen sc1")
    a("s_mov_b64 exec, -1")
    a(f"v_and_b32 {t1}, 7, {vC}")
    a(f"v_lshlrev_b32 {t1}, 5, {t1}")
    a(f"v_lshl_add_u32 {t1}, {vG}, 3, {t1}")
    a(f"s_lshl_b32 {sA}, {sH}, 14\ns_lshl_b32 {sB}, {sW}, 8\ns_add_u32 {sB}, {sB}, {sA}")
    a(f"v_add_u32 {t1}, {sB}, {t1}")
    a(f"v_and_b32 {t2}, 7, {vLANE}")
    a(f"v_lshlrev_b32 {t2}, 11, {t2}")
    a(f"s_add_u32 {sA}, {sA}, 1024")
    a(f"v_add_u32 {t2}, {sA}, {t2}")
    a(f"s_mov_b32 {sSpin}, {SPIN}")
    a.label("L_h1")
    for r in range(8):
        if r % 2 == 0: a(f"s_mov_b32 {sA}, {2048*r}")
        a(f"buffer_load_dwordx2 v[{16+2*r}:{17+2*r}], {t1}, {SRD_WS}, {sA} offen offset:{2048*(r%2)} sc1")
    a(f"buffer_load_dwordx4 v[32:35], {t2}, {SRD_WS}, 0 offen sc1")
    a("s_waitcnt vmcnt(0)")
    tags_bad([f"v{17+2*r}" for r in range(8)] + ["v33", "v35"], t3, t4)
    spin_tail("L_h1", poll_sleep)
    if stamps and not pst: stamp(4)
    a("v_mov_b32 v33, v32")
    for r in (4, 2, 1):
        a(f"v_max_f32_dpp v33, v33, v33 row_ror:{r} row_mask:0xf bank_mask:0xf")
    a("v_sub_f32 v32, v32, v33")
    a(f"v_mul_f32 v32, {sLog2e}, v32")
    a("v_exp_f32 v32, v32")
    a("v_mul_f32 v34, v32, v34")
    for r in (4, 2, 1):
        a(f"v_add_f32_dpp v34, v34, v34 row_ror:{r} row_mask:0xf bank_mask:0xf")
    a("v_mul_f32_dpp v33, v32, v16 row_newbcast:0 row_mask:0xf bank_mask:0xf")
    for r in range(1, 8):
        a(f"v_fmac_f32_dpp v33, v32, v{16+2*r} row_newbcast:{r} row_mask:0xf bank_mask:0xf")
    a("v_rcp_f32 v28, v34")
    a("v_fma_f32 v29, -v34, v28, 1.0\nv_fma_f32 v28, v29, v28, v28")
    a("v_mul_f32 v29, v33, v28")
    a("v_fma_f32 v30, -v29, v34, v33\nv_fma_f32 v29, v30, v28, v29")
    a(f"v_cvt_pk_bf16_f32 {vPP}, v29, v29")
    for j in range(8):
        As = A0 if j % 2 == 0 else A1
        ands(As, vPP, j)
        cin = "0" if j == 0 else r4(ACC)
        a(f"v_mfma_f32_16x16x32_bf16 {r4(ACC)}, {r4(As)}, {r4(WOR + 4*j)}, {cin}")
    a(f"v_lshlrev_b32 {t1}, 5, {vC}")
    a(f"v_lshl_add_u32 {t1}, {vG}, 4, {t1}")
    a(f"s_lshl_b32 {sA}, {sW}, 9")
    a(f"v_add_u32 {t1}, {sA}, {t1}")
    a("s_mov_b32 exec_hi, 0")
    a(f"ds_write_b128 {t1}, {r4(ACC)} offset:{L_YP}")
    a("s_mov_b32 exec_hi, -1")
    a("s_waitcnt lgkmcnt(0)")
    a("s_barrier")
    a(f"s_cmp_lg_u32 {sW}, 0")
    a("s_cbranch_scc1 L_end")
    a(f"v_and_b32 {t1}, 31, {vLANE}\nv_lshlrev_b32 {t1}, 4, {t1}")
    for w in range(4):
        a(f"ds_read_b128 {r4(16+4*w)}, {t1} offset:{L_YP + 512*w}")
    a("s_waitcnt lgkmcnt(0)")
    for i in range(4):
        a(f"v_add_f32 v{16+i}, v{16+i}, v{20+i}")
        a(f"v_add_f32 v{24+i}, v{24+i}, v{28+i}")
    for i in range(4):
        a(f"v_add_f32 v{48+2*i}, v{16+i}, v{24+i}")
        a(f"v_mov_b32 v{49+2*i}, {vNon}")
    a("s_mov_b32 exec_hi, 0")
    a(f"buffer_store_dwordx4 v[48:51], {vYoff}, {SRD_WS}, 0 offen sc1")
    a(f"buffer_store_dwordx4 v[52:55], {vYoff}, {SRD_WS}, 0 offen offset:16 sc1")
    a("s_mov_b32 exec_hi, -1")
    def dump_stamps(last):
        if not stamps: return
        stamp(last)
        a(f"s_lshl_b32 {sA}, s2, 5\ns_add_u32 {sA}, {sA}, {STAMP}")
        a(f"v_mov_b32 {t5}, {sA}")
        for i in range(8): a(f"v_mov_b32 v{24+i}, s{90+i}")
        a("s_mov_b64 exec, 1")
        a(f"buffer_store_dwordx4 v[24:27], {t5}, {SRD_WS}, 0 offen")
        a(f"buffer_store_dwordx4 v[28:31], {t5}, {SRD_WS}, 0 offen offset:16")
        a("s_mov_b64 exec, -1")
    dump_stamps(7 if pst else 5)
    a(f"s_cmp_lg_u32 {sS}, 0\ns_cbranch_scc1 L_end")
    a(f"s_cmp_ge_u32 {sH}, 9\ns_cbranch_scc1 L_end")
    srd(60, "s24", "s25", 1152)
    a(f"s_lshl_b32 {sA}, {sH}, 9")
    a(f"v_lshl_add_u32 {t1}, {vC}, 5, {sA}")
    a(f"v_mul_u32_u24 {t2}, 4608, {vG}")
    a(f"v_add_u32 {t1}, {t1}, {t2}")
    a(f"s_lshl_b32 {sA}, {sH}, 7")
    a(f"v_lshl_add_u32 {t2}, {vC}, 3, {sA}")
    a(f"buffer_load_dwordx2 v[4:5], {t2}, {SRD_X}, 0 offen")
    RB, RA = 64, 128
    def gather(label, base, reg0):
        a(f"s_mov_b32 {sSpin}, {SPIN}")
        a.label(label)
        for t in range(8):
            a(f"s_mov_b32 {sA}, {base + 4*4608*t}")
            a(f"buffer_load_dwordx4 {r4(reg0+8*t)}, {t1}, {SRD_WS}, {sA} offen sc1")
            a(f"buffer_load_dwordx4 {r4(reg0+8*t+4)}, {t1}, {SRD_WS}, {sA} offen offset:16 sc1")
        a("s_waitcnt vmcnt(0)")
        tags_bad([f"v{reg0+2*i+1}" for i in range(32)], t3, t4)
        spin_tail(label, poll_sleep)
        for i in range(4):
            for t in range(1, 8):
                a(f"v_add_f32 v{reg0+2*i}, v{reg0+2*i}, v{reg0+8*t+2*i}")
        for i in range(4):
            v = f"v{reg0+2*i}"
            a(f"v_mov_b32 v26, {v}\nv_permlane16_swap_b32 {v}, v26\nv_add_f32 {v}, {v}, v26")
            a(f"v_mov_b32 v26, {v}\nv_permlane32_swap_b32 {v}, v26\nv_add_f32 {v}, {v}, v26")
    gather("L_gb", YB, RB)
    gather("L_ga", YA, RA)
    a("v_lshlrev_b32 v16, 16, v4\nv_and_b32 v17, 0xffff0000, v4\nv_lshlrev_b32 v18, 16, v5\nv_and_b32 v19, 0xffff0000, v5")
    for i in range(4):
        a(f"v_cvt_pk_bf16_f32 v{RA+2*i}, 0, v{RA+2*i}")
        a(f"v_cvt_pk_bf16_f32 v{RB+2*i}, 0, v{RB+2*i}")
        a(f"v_add_f32 v{16+i}, v{16+i}, v{RA+2*i}")
        a(f"v_cvt_pk_bf16_f32 v{16+i}, 0, v{16+i}")
        a(f"v_add_f32 v{16+i}, v{16+i}, v{RB+2*i}")
    a("v_cvt_pk_bf16_f32 v20, v16, v17\nv_cvt_pk_bf16_f32 v21, v18, v19")
    a("s_mov_b64 exec, 0xffff")
    a(f"buffer_store_dwordx2 v[20:21], {t2}, {SRD_OUT}, 0 offen")
    a(f"s_cmp_eq_u32 {sH}, 0\ns_cselect_b32 {sA}, {EPOCH}, {OOB}")
    a(f"v_mov_b32 {t3}, {sA}")
    a("s_mov_b64 exec, 1")
    a(f"buffer_store_dword {vNon}, {t3}, {SRD_WS}, 0 offen sc1")
    a("s_mov_b64 exec, -1")
    dump_stamps(6)
    a.label("L_end")
    a("s_endpgm")
    body = a.text()
    name = KNAME + "_kernel"
    hdr = "; fused decode block: out = x + attn(LN(x)) @ wo + silu(LN(x) @ w1) @ w2\n"
    return wrap([(name, body, 256, 102, 256)], [f"; @launch grid=({NWG},1,1) block=(256,1,1) lds={LDS_BYTES}"], hdr)

if __name__ == "__main__":
    if len(sys.argv) > 2:
        cfgs = json.load(open(sys.argv[1]))
        for name, kw in cfgs.items():
            open(f"{sys.argv[2]}{name}.s", "w").write(gen(**kw))
    else:
        open(sys.argv[1], "w").write(gen())
```
